```python
import torch

def _softmax(x, axis=-1):
    return torch.softmax(x, dim=axis)
def _gelu(x):
    return torch.nn.functional.gelu(x, approximate="tanh")
def _silu(x):
    return torch.nn.functional.silu(x)
def _sigmoid(x):
    return torch.sigmoid(x)
def _layernorm(x, axis=-1, eps=1e-5):
    m = x.mean(dim=axis, keepdim=True)
    v = x.var(dim=axis, keepdim=True, unbiased=False)
    return (x - m) / torch.sqrt(v + eps)
def _scatter_add(tgt, idx, src, axis=0):
    return tgt.clone().index_add_(axis, idx, src)
def _segment_sum(src, seg, n):
    out = torch.zeros((n,) + src.shape[1:], dtype=src.dtype)
    return out.index_add_(0, seg, src)
def _pad(x, pw):
    flat = tuple(v for pair in reversed(pw) for v in pair)
    return torch.nn.functional.pad(x, flat)

kernel_name = 'standalone__glu_gated_glu__prompt'

def setup_inputs():

    _w = (lambda a: (lambda t: t.to(torch.bfloat16) if t.is_floating_point() else t)(torch.as_tensor(a)))
    B, S, D, F = 1, 2048, 448, 1792
    return {
        "x": _w((lambda *s: torch.randn(*s, dtype=torch.bfloat16) * 0.2)(B, S, D)),
        "w_gate": _w((lambda *s: torch.randn(*s, dtype=torch.bfloat16) * 0.2)(D, F)),
        "w_up": _w((lambda *s: torch.randn(*s, dtype=torch.bfloat16) * 0.05)(D, F)),
        "w_down": _w((lambda *s: torch.randn(*s, dtype=torch.bfloat16) * 0.05)(F, D)),
    }

def reference(x, w_gate, w_up, w_down):
    g = torch.einsum("bsd,df->bsf", x, w_gate)
    u = torch.einsum("bsd,df->bsf", x, w_up)
    h = _sigmoid(g) * u
    return torch.einsum("bsf,fd->bsd", h, w_down)
```

```python
HEADER = """; Kernarg layout for this problem (56 bytes, ptrs only, base s[0:1]):
"""
class Asm:
    def __init__(self):
        self.lines = []
    def __call__(self, s):
        for l in s.strip("\n").split("\n"):
            self.lines.append("    " + l.strip() if not l.strip().endswith(":") else l.strip())
    def label(self, n):
        self.lines.append(n + ":")
    def text(self):
        return "\n".join(self.lines) + "\n"

def kernel_text(name, body, vgpr=256, accum=256, sgpr=102):
    return f""".text
.globl {name}
.p2align 8
.type {name},@function
{name}:
{body}
.section .rodata,"a"
.p2align 6
.amdhsa_kernel {name}
  .amdhsa_next_free_vgpr {vgpr}
  .amdhsa_next_free_sgpr {sgpr}
  .amdhsa_accum_offset {accum}
  .amdhsa_group_segment_fixed_size 0
  .amdhsa_kernarg_size 56
  .amdhsa_user_sgpr_count 2
  .amdhsa_user_sgpr_kernarg_segment_ptr 1
  .amdhsa_system_sgpr_workgroup_id_x 1
.end_amdhsa_kernel
"""
TARGET = '.amdgcn_target "amdgcn-amd-amdhsa--gfx950"\n'
XB = 2048*448*2
WB = 448*1792*2
WSB = 256<<20
STAMP_OFF = 200<<20
```

```python
import sys
from gen_common import *
NWG = 224
NSLOT = 10
SLOT = 16384
STAMPS = "-stamps" in sys.argv
ROT = "-norot" not in sys.argv
outf = [a for a in sys.argv[1:] if a.endswith(".s")][0]

class Cnt:
    def __init__(self, a, name, maxv):
        self.a = a; self.name = name; self.q = []; self.maxv = maxv
    def issue(self, tag):
        self.q.append(tag)
        assert len(self.q) <= self.maxv, (self.name, len(self.q))
    def wait(self, pred):
        idx = -1
        for i, t in enumerate(self.q):
            if pred(t): idx = i
        if idx < 0: return
        n = len(self.q) - 1 - idx
        self.a(f"s_waitcnt {self.name}({n})")
        self.q = self.q[idx+1:]

def srd(a, d, lo, hi, size):
    a(f"""
    s_mov_b32 s{d}, s{lo}
    s_mov_b32 s{d+1}, s{hi}
    s_mov_b32 s{d+2}, {size}
    s_mov_b32 s{d+3}, 0x20000
    """)

class Stamper:
    def __init__(self, a, kidx):
        self.a = a; self.n = 0; self.kidx = kidx
    def stamp(self):
        if not STAMPS: return
        assert self.n < 8
        self.a(f"s_memrealtime s[{80+2*self.n}:{81+2*self.n}]")
        self.n += 1
    def flush(self, wsrd):
        if not STAMPS: return
        a = self.a
        while self.n < 8: self.stamp()
        a(f"""
        s_waitcnt lgkmcnt(0)
        s_lshl_b32 s96, s2, 3
        s_add_u32 s96, s96, s34
        s_lshl_b32 s96, s96, 7
        s_add_u32 s96, s96, {STAMP_OFF + self.kidx*64}
        v_mov_b32 v252, s96
        s_mov_b64 exec, 1
        """)
        for j in range(8):
            a(f"""
            v_mov_b32 v250, s{80+2*j}
            v_mov_b32 v251, s{81+2*j}
            buffer_store_dwordx2 v[250:251], v252, {wsrd}, 0 offen offset:{8*j}
            s_nop 2
            """)

def decode_wg(a):
    a(f"""
    s_and_b32 s35, s2, 7             ; xcd
    s_lshr_b32 s36, s2, 3            ; j 0..27
    s_and_b32 s37, s35, 3            ; mgrp
    s_lshr_b32 s38, s35, 2           ; fgrp
    s_and_b32 s39, s36, 3
    s_lshr_b32 s40, s36, 2
    """)

def gen_k1():
    a = Asm(); st = Stamper(a, 0)
    vm = Cnt(a, "vmcnt", 63); lg = Cnt(a, "lgkmcnt", 15)
    XF = 16
    ACC = [128, 160]
    WF = 192
    TMP = 216
    a(f"""
    s_cmp_ge_u32 s2, {NWG}
    s_cbranch_scc1 L1_end
    """)
    st.stamp()
    a(f"""
    s_load_dwordx4 s[4:7], s[0:1], 0
    s_load_dwordx2 s[28:29], s[0:1], 16
    s_load_dwordx2 s[32:33], s[0:1], 48
    v_lshrrev_b32 v1, 6, v0
    v_and_b32 v2, 63, v0             ; lane
    v_readfirstlane_b32 s34, v1      ; wave
    v_lshrrev_b32 v3, 3, v2          ; l/8
    v_and_b32 v4, 7, v2              ; l%8
    v_lshrrev_b32 v5, 4, v2          ; l>>4
    v_xor_b32 v6, v4, v5
    v_mul_u32_u24 v8, 896, v3
    v_lshl_add_u32 v10, v6, 4, v8
    v_xor_b32 v7, 4, v6
    v_lshl_add_u32 v11, v7, 4, v8
    v_add_u32 v11, {7168-1024}, v11
    v_and_b32 v6, 1, v5
    v_lshlrev_b32 v6, 2, v6
    v_xor_b32 v6, v4, v6
    v_mul_u32_u24 v8, 3584, v3
    v_lshl_add_u32 v12, v6, 4, v8
    v_add_u32 v13, {8*3584-1024}, v12
    """)
    decode_wg(a)
    a(f"""
    s_lshl_b32 s41, s37, 2
    s_add_u32 s41, s41, s39          ; Mtile 0..15
    s_mul_i32 s42, s38, 7
    s_add_u32 s42, s42, s40          ; Ftile 0..13
    s_lshl_b32 s43, s41, 3
    s_add_u32 s43, s43, s34
    s_mul_i32 s43, s43, {16*896}
    s_and_b32 s44, s34, 3            ; w&3 = mi
    s_lshr_b32 s45, s34, 2           ; fi
    s_mul_i32 s46, s44, {16*3584}
    s_lshl_b32 s47, s42, 8
    s_add_u32 s46, s46, s47
    s_lshl_b32 s48, s34, 11          ; lds wave offset in slot
    """)
    if ROT:
        a(f"""
        s_lshl_b32 s49, s39, 1
        s_add_u32 s49, s49, s40
        s_cmp_ge_u32 s49, 7
        s_cselect_b32 s50, 7, 0
        s_sub_u32 s49, s49, s50
        """)
    else:
        a("s_mov_b32 s49, 0")
    a("s_waitcnt lgkmcnt(0)")
    srd(a, 8, 4, 5, XB)
    a(f"""
    s_cmp_lt_u32 s34, 4
    s_cselect_b32 s12, s6, s28
    s_cselect_b32 s13, s7, s29
    s_mov_b32 s14, {WB}
    s_mov_b32 s15, 0x20000
    """)
    seq = []
    for c in range(7):
        seq.append(("X", c, 0)); seq.append(("W", c, 0))
    for c in range(7):
        seq.append(("W", c, 1))
    state = {"next": 0}
    def issue_slot():
        n = state["next"]
        if n >= len(seq): return []
        state["next"] += 1
        kind, c, p = seq[n]
        base = (n % NSLOT) * SLOT
        ins = []
        if kind == "X":
            ins.append(f"s_add_u32 m0, s48, {base}\ns_lshl_b32 s50, s49, 7\ns_add_u32 s50, s50, s43\nbuffer_load_dwordx4 v10, s[8:11], s50 offen lds")
            ins.append(f"buffer_load_dwordx4 v11, s[8:11], s50 offen offset:1024 lds")
        else:
            extra = f"s_add_u32 s50, s50, 128\n" if p else ""
            ins.append(f"s_add_u32 m0, s48, {base}\ns_mul_i32 s50, s49, {64*3584}\ns_add_u32 s50, s50, s46\n{extra}buffer_load_dwordx4 v12, s[12:15], s50 offen lds")
            ins.append(f"buffer_load_dwordx4 v13, s[12:15], s50 offen offset:1024 lds\ns_add_u32 s49, s49, 1\ns_cmp_eq_u32 s49, 7\ns_cselect_b32 s49, 0, s49")
        return [(i, n) for i in ins]
    def emit_dma(item):
        a(item[0]); vm.issue(("slot", item[1]))
    for _ in range(NSLOT):
        for it in issue_slot(): emit_dma(it)
    srd(a, 24, 32, 33, WSB)
    st.stamp()
    a(f"""
    v_and_b32 v3, 31, v2             ; l%32
    v_lshrrev_b32 v4, 5, v2          ; hi
    s_lshl_b32 s50, s44, 5
    v_add_u32 v5, s50, v3            ; row = 32mi + l%32
    v_bfe_u32 v6, v5, 1, 3           ; sw
    v_xor_b32 v6, v6, v4
    v_lshlrev_b32 v6, 4, v6
    v_lshl_add_u32 v14, v5, 7, v6
    v_bfe_u32 v5, v2, 2, 2           ; r
    v_lshl_add_u32 v6, v4, 3, v5     ; 8hi + r
    v_lshlrev_b32 v6, 7, v6
    v_lshrrev_b32 v7, 1, v5          ; r>>1
    v_xor_b32 v7, s45, v7            ; fi ^ (r>>1)
    v_lshl_add_u32 v6, v7, 6, v6
    v_bfe_u32 v7, v2, 4, 1           ; fsub
    v_lshl_add_u32 v6, v7, 5, v6
    v_and_b32 v7, 3, v2
    v_lshl_add_u32 v240, v7, 3, v6
    v_add_u32 v241, 0x10000, v240
    v_add_u32 v242, 0x20000, v240
    v_lshlrev_b32 v243, 4, v2
    s_lshl_b32 s52, s41, 2
    s_add_u32 s52, s52, s44
    s_mul_i32 s52, s52, 112
    s_lshl_b32 s53, s42, 3
    s_add_u32 s52, s52, s53
    s_lshl_b32 s53, s45, 1
    s_add_u32 s52, s52, s53
    s_lshl_b32 s52, s52, 10
    s_mov_b32 s54, 0xbfb8aa3b        ; -log2(e)
    """)
    steps = [[2*t, 2*t+1] for t in range(7)] + [[14+t] for t in range(7)]
    NK = 56
    def reads(n):
        t, s = divmod(n, 4)
        p, c = divmod(t, 7)
        buf = WF + 8*(n % 3)
        if s == 0:
            vm.wait(lambda tg: tg[0] == "slot" and tg[1] in steps[t])
            a("s_barrier")
        if p == 0:
            xs = (steps[t][0] % NSLOT) * SLOT
            r = XF + 16*c + 4*s
            a(f"v_xor_b32 v15, {xs | (s << 5)}, v14\nds_read_b128 v[{r}:{r+3}], v15"); lg.issue(n)
        ws = (steps[t][-1] % NSLOT) * SLOT
        for m in range(2):
            for tt in range(2):
                off = ws + m*8192 + s*2048 + tt*512
                r = buf + 4*m + 2*tt
                a(f"ds_read_b64_tr_b16 v[{r}:{r+1}], v{240 + off//65536} offset:{off % 65536}"); lg.issue(n)
    def epilogue_ops(p):
        G = ACC[p]; U = G + 16
        ops = []
        for q in range(4):
            rs = [4*q + i for i in range(4)]
            for i in rs: ops.append(f"v_mul_f32 v{G+i}, s54, v{G+i}")
            for i in rs: ops.append(f"v_exp_f32 v{G+i}, v{G+i}")
            for i in rs: ops.append(f"v_add_f32 v{G+i}, 1.0, v{G+i}")
            for i in rs: ops.append(f"v_rcp_f32 v{G+i}, v{G+i}")
            for i in rs: ops.append(f"v_mul_f32 v{G+i}, v{G+i}, v{U+i}")
            ops.append(f"v_cvt_pk_bf16_f32 v{TMP+2*q}, v{G+4*q}, v{G+4*q+1}")
            ops.append(f"v_cvt_pk_bf16_f32 v{TMP+2*q+1}, v{G+4*q+2}, v{G+4*q+3}")
            if q % 2 == 1:
                j = q // 2
                ops.append(("store", f"buffer_store_dwordx4 v[{TMP+4*j}:{TMP+4*j+3}], v243, s[24:27], s52 offen offset:{j*1024}"))
        return ops
    def emit_op(o):
        if isinstance(o, tuple):
            a(o[1]); vm.issue(("st", 0))
        else:
            a(o)
    reads(0); reads(1)
    pend_dma = []
    pend_epi = []
    for n in range(NK):
        t, s = divmod(n, 4)
        p, c = divmod(t, 7)
        if n + 2 < NK:
            reads(n + 2)
            if (n + 2) % 4 == 0:
                t2 = (n + 2)//4
                if t2 >= 2:
                    for _ in steps[t2-2]:
                        pend_dma += issue_slot()
        lg.wait(lambda tg: tg <= n)
        buf = WF + 8*(n % 3)
        xr = XF + 16*c + 4*s
        first = (c == 0 and s == 0)
        for m in range(2):
            acc = ACC[p] + 16*m
            csrc = "0" if first else f"v[{acc}:{acc+15}]"
            a(f"v_mfma_f32_32x32x16_bf16 v[{acc}:{acc+15}], v[{buf+4*m}:{buf+4*m+3}], v[{xr}:{xr+3}], {csrc}")
            if pend_dma:
                emit_dma(pend_dma.pop(0))
            if n >= 28 + 2:
                for _ in range(4):
                    if pend_epi: emit_op(pend_epi.pop(0))
        if n == 27:
            pend_epi = epilogue_ops(0)
            st.stamp()
        if n == 28 + 13:
            a("s_add_u32 s52, s52, 4096")
            assert not pend_epi
    st.stamp()
    a("s_nop 15")
    for o in epilogue_ops(1): emit_op(o)
    st.stamp()
    if STAMPS:
        a("s_waitcnt vmcnt(0)")
        st.stamp()
    st.flush("s[24:27]")
    a.label("L1_end")
    a("s_endpgm")
    return a.text()

def gen_k2():
    a = Asm(); st = Stamper(a, 1)
    vm = Cnt(a, "vmcnt", 63); lg = Cnt(a, "lgkmcnt", 15)
    HF = 16
    ACC = 128
    WF = 160
    a(f"""
    s_cmp_ge_u32 s2, {NWG}
    s_cbranch_scc1 L2_end
    """)
    st.stamp()
    a(f"""
    s_load_dwordx4 s[4:7], s[0:1], 24
    s_load_dwordx2 s[32:33], s[0:1], 48
    v_lshrrev_b32 v1, 6, v0
    v_and_b32 v2, 63, v0             ; lane
    v_readfirstlane_b32 s34, v1      ; wave
    v_lshrrev_b32 v3, 3, v2          ; l/8
    v_and_b32 v4, 7, v2              ; l%8
    v_bfe_u32 v6, v2, 4, 1
    v_lshlrev_b32 v6, 2, v6
    v_xor_b32 v6, v4, v6
    v_mul_u32_u24 v8, 896, v3
    v_lshl_add_u32 v12, v6, 4, v8
    v_add_u32 v13, {8*896-1024}, v12
    v_lshlrev_b32 v14, 4, v2         ; lane*16
    """)
    decode_wg(a)
    a(f"""
    s_lshl_b32 s41, s37, 3
    s_lshl_b32 s42, s38, 2
    s_add_u32 s41, s41, s42
    s_add_u32 s41, s41, s39          ; m64 0..31
    s_and_b32 s44, s34, 1            ; mi
    s_lshr_b32 s45, s34, 1           ; kq
    s_lshr_b32 s46, s34, 2
    s_lshl_b32 s46, s46, 3
    s_and_b32 s47, s34, 3
    s_add_u32 s46, s46, s47
    s_mul_i32 s46, s46, {16*896}
    s_lshl_b32 s47, s40, 7
    s_add_u32 s46, s46, s47
    s_lshl_b32 s48, s34, 11          ; lds wave offset in slot
    s_lshl_b32 s52, s41, 1
    s_add_u32 s52, s52, s44
    s_mul_i32 s52, s52, 112
    s_lshr_b32 s53, s45, 1
    s_lshl_b32 s53, s53, 3
    s_add_u32 s52, s52, s53
    s_and_b32 s53, s45, 1
    s_lshl_b32 s53, s53, 1
    s_add_u32 s52, s52, s53
    s_lshl_b32 s52, s52, 10
    """)
    if ROT:
        a(f"""
        s_lshl_b32 s49, s39, 1
        s_add_u32 s49, s49, s40
        s_cmp_ge_u32 s49, 7
        s_cselect_b32 s50, 7, 0
        s_sub_u32 s49, s49, s50
        """)
    else:
        a("s_mov_b32 s49, 0")
    a("s_mov_b32 s55, s49")
    a("s_waitcnt lgkmcnt(0)")
    srd(a, 16, 4, 5, WB)
    srd(a, 24, 32, 33, WSB)
    state = {"next": 0}
    def issue_slot():
        n = state["next"]
        if n >= 14: return []
        state["next"] += 1
        p = n // 7
        base = (n % NSLOT) * SLOT
        extra = f"s_add_u32 s50, s50, {64*896}\n" if p else ""
        ins = [f"s_add_u32 m0, s48, {base}\ns_mul_i32 s50, s49, {256*896}\ns_add_u32 s50, s50, s46\n{extra}buffer_load_dwordx4 v12, s[16:19], s50 offen lds",
               f"buffer_load_dwordx4 v13, s[16:19], s50 offen offset:1024 lds\ns_add_u32 s49, s49, 1\ns_cmp_eq_u32 s49, 7\ns_cselect_b32 s49, 0, s49"]
        return [(i, n) for i in ins]
    def emit_dma(item):
        a(item[0]); vm.issue(("slot", item[1]))
    def issue_h(n):
        p = n // 7
        r = HF + 8*n
        extra = f"s_add_u32 s50, s50, 4096\n" if p else ""
        a(f"s_lshl_b32 s50, s55, 14\ns_add_u32 s50, s50, s52\n{extra}buffer_load_dwordx4 v[{r}:{r+3}], v14, s[24:27], s50 offen"); vm.issue(("h", 2*n))
        a(f"buffer_load_dwordx4 v[{r+4}:{r+7}], v14, s[24:27], s50 offen offset:1024\ns_add_u32 s55, s55, 1\ns_cmp_eq_u32 s55, 7\ns_cselect_b32 s55, 0, s55"); vm.issue(("h", 2*n+1))
    for n in range(NSLOT):
        for it in issue_slot(): emit_dma(it)
        issue_h(n)
    hnext = NSLOT
    srd(a, 20, 6, 7, XB)
    st.stamp()
    a(f"""
    v_lshrrev_b32 v4, 5, v2          ; hi
    v_bfe_u32 v5, v2, 2, 2           ; r
    v_lshl_add_u32 v6, v4, 2, v5     ; 4hi + r
    v_lshlrev_b32 v6, 7, v6
    v_lshrrev_b32 v7, 1, v5          ; r>>1
    v_lshl_add_u32 v6, v7, 6, v6     ; ni=0
    v_bfe_u32 v7, v2, 4, 1           ; fsub
    v_lshl_add_u32 v6, v7, 5, v6
    v_and_b32 v7, 3, v2
    v_lshl_add_u32 v6, v7, 3, v6
    s_lshl_b32 s50, s45, 12
    v_add_u32 v240, s50, v6
    v_add_u32 v241, 0x10000, v240
    v_add_u32 v242, 0x20000, v240
    v_xor_b32 v243, 64, v240         ; ni=1
    v_xor_b32 v244, 64, v241
    v_xor_b32 v245, 64, v242
    """)
    NK = 28
    def reads(n):
        t, s = divmod(n, 2)
        buf = WF + 8*(n % 3)
        if s == 0:
            vm.wait(lambda tg: tg[0] == "slot" and tg[1] == t)
            a("s_barrier")
        ws = (t % NSLOT) * SLOT
        for ni in range(2):
            for tt in range(2):
                off = ws + s*2048 + tt*1024
                r = buf + 4*ni + 2*tt
                a(f"ds_read_b64_tr_b16 v[{r}:{r+1}], v{240 + 3*ni + off//65536} offset:{off % 65536}"); lg.issue(n)
    reads(0); reads(1)
    for n in range(NK):
        t, s = divmod(n, 2)
        if n + 2 < NK:
            reads(n + 2)
            if (n + 2) % 2 == 0:
                t2 = (n + 2)//2
                if t2 >= 2:
                    for it in issue_slot(): emit_dma(it)
                    if hnext < 14:
                        issue_h(hnext); hnext += 1
        lg.wait(lambda tg: tg <= n)
        vm.wait(lambda tg: tg[0] == "h" and tg[1] <= n)
        buf = WF + 8*(n % 3)
        hr = HF + 4*n
        for ni in range(2):
            acc = ACC + 16*ni
            csrc = "0" if n == 0 else f"v[{acc}:{acc+15}]"
            a(f"v_mfma_f32_32x32x16_bf16 v[{acc}:{acc+15}], v[{buf+4*ni}:{buf+4*ni+3}], v[{hr}:{hr+3}], {csrc}")
        if n == 13: st.stamp()
    st.stamp()
    RED = 4*SLOT
    a(f"""
    s_lshl_b32 s50, s44, 15          ; mi*32768
    s_lshl_b32 s51, s45, 11
    s_add_u32 s51, s51, s50
    s_add_u32 s51, s51, {RED}
    v_add_u32 v3, s51, v14
    s_lshl_b32 s51, s45, 13          ; dest q*8192
    s_add_u32 s51, s51, s50
    s_add_u32 s51, s51, {RED}
    v_add_u32 v4, s51, v14
    ; out offset: row = 64*m64 + 32*mi + l%32 ; col = 64*ntile + 16*kq + 8*hi
    v_and_b32 v5, 31, v2
    v_mul_u32_u24 v5, 896, v5
    v_lshrrev_b32 v6, 5, v2
    v_lshl_add_u32 v5, v6, 4, v5
    s_lshl_b32 s56, s41, 1
    s_add_u32 s56, s56, s44
    s_mul_i32 s56, s56, {32*896}
    s_lshl_b32 s57, s40, 7
    s_add_u32 s56, s56, s57
    s_lshl_b32 s57, s45, 5
    s_add_u32 s56, s56, s57
    s_nop 7
    """)
    for q in range(4):
        for hf in range(2):
            r = ACC + 8*q + 4*hf
            a(f"ds_write_b128 v3, v[{r}:{r+3}] offset:{q*8192 + hf*1024}")
    a("s_waitcnt lgkmcnt(0)\ns_barrier")
    for sq in range(4):
        for hf in range(2):
            r = 16 + 8*sq + 4*hf
            a(f"ds_read_b128 v[{r}:{r+3}], v4 offset:{sq*2048 + hf*1024}")
    a("s_waitcnt lgkmcnt(4)")
    for i in range(8): a(f"v_add_f32 v{16+i}, v{16+i}, v{24+i}")
    a("s_waitcnt lgkmcnt(0)")
    for i in range(8): a(f"v_add_f32 v{32+i}, v{32+i}, v{40+i}")
    for i in range(8): a(f"v_add_f32 v{16+i}, v{16+i}, v{32+i}")
    for i in range(4): a(f"v_cvt_pk_bf16_f32 v{48+i}, v{16+2*i}, v{17+2*i}")
    a(f"""
    s_nop 1
    v_permlane32_swap_b32 v48, v50
    v_permlane32_swap_b32 v49, v51
    buffer_store_dwordx4 v[48:51], v5, s[20:23], s56 offen
    """)
    st.stamp()
    if STAMPS:
        a("s_waitcnt vmcnt(0)")
        st.stamp()
    st.flush("s[24:27]")
    a.label("L2_end")
    a("s_endpgm")
    return a.text()

src = HEADER
src += f"; @launch kernel=glu_h_kernel grid=({NWG},1,1) block=(512,1,1) lds={NSLOT*SLOT}\n"
src += f"; @launch kernel=glu_o_kernel grid=({NWG},1,1) block=(512,1,1) lds={NSLOT*SLOT}\n"
src += TARGET + kernel_text("glu_h_kernel", gen_k1()) + kernel_text("glu_o_kernel", gen_k2())
open(outf, "w").write(src)
```

```python
import sys, subprocess, re
from gen_common import *
def opt(name, default):
    for a in sys.argv[1:]:
        if a.startswith(f"-{name}="): return int(a.split("=")[1])
    return default
NWG = 224
NSLOT = 10
SLOT = 16384
LDS = 163840
STAMPS = "-stamps" in sys.argv
CYC = "-cyc" in sys.argv
ROT = opt("rot", 1)
LA = opt("la", 6)
LAG = opt("lag", 3)
EPG = opt("epg", 4)
EPG2 = opt("epg2", 3)
SIGD = opt("sigd", 36)
AHEAD = opt("ahead", 6)
AHEAD0 = opt("ahead0", 5)
GCOST = opt("gcost", 140)
PREF = opt("pref", 1)
CPRIO = opt("cprio", 3)
W2 = opt("w2", 1)
NI = opt("ni", 8)
P0I = opt("p0i", 20)
S2 = opt("s2", 0); S3 = opt("s3", 6)
E1 = opt("e1", 12)
P2I = opt("p2i", 20); CHK2 = opt("chk2", 36)
P3I = opt("p3i", 40); CHK3 = opt("chk3", 54)
HPG = opt("hpg", 1)
NOSYNC = "-nosync" in sys.argv
VERB = "-v" in sys.argv
AT = [int(x) for a_ in sys.argv[1:] if a_.startswith("-at=") for x in a_[4:].split(",")]
outf = [a for a in sys.argv[1:] if a.endswith(".s")][0]
FLAG_OFF = 8 << 20
KN = "standalone__glu_gated_glu__prompt_kernel"
SPIN_G = 40000
TS = 's_memtime' if CYC else 's_memrealtime'

class Cnt:
    forced = 0
    def __init__(self, a, name, maxv):
        self.a = a; self.name = name; self.q = []; self.maxv = maxv
    def emit(self, ins, tag):
        if len(self.q) >= self.maxv:
            self.a(f"s_waitcnt {self.name}({self.maxv-1})"); self.q = self.q[len(self.q)-(self.maxv-1):]
            Cnt.forced += 1
        self.a(ins); self.q.append(tag)
    def wait(self, pred):
        idx = -1
        for i, t in enumerate(self.q):
            if pred(t): idx = i
        if idx < 0: return
        n = len(self.q) - 1 - idx
        self.a(f"s_waitcnt {self.name}({n})")
        self.q = self.q[idx+1:]

def srd(a, d, lo, size):
    a(f"""
    s_mov_b32 s{d}, s{lo}
    s_mov_b32 s{d+1}, s{lo+1}
    s_mov_b32 s{d+2}, {size}
    s_mov_b32 s{d+3}, 0x20000
    """)

class Stamper:
    def __init__(self, a, comp=False):
        self.a = a; self.n = 1; self.comp = comp
    def stamp(self, force=False):
        if not STAMPS: return
        if AT and self.comp and not force: return
        assert self.n < 11
        self.a(f"{TS} s[{80+2*self.n}:{81+2*self.n}]")
        self.n += 1
    def flush(self):
        if not STAMPS: return
        a = self.a
        while self.n < 11: self.stamp(True)
        a(f"""
        s_waitcnt lgkmcnt(0)
        s_lshl_b32 s3, s2, 3
        s_add_u32 s3, s3, s40
        s_lshl_b32 s3, s3, 7
        s_add_u32 s3, s3, {STAMP_OFF}
        v_mov_b32 v12, s3
        s_mov_b64 exec, 1
        """)
        for j in range(11):
            a(f"""
            v_mov_b32 v14, s{80+2*j}
            v_mov_b32 v15, s{81+2*j}
            buffer_store_dwordx2 v[14:15], v12, s[32:35], 0 offen offset:{8*j}
            s_nop 2
            """)

def slotX(c): return 2*c
def slotW(c): return 2*c+1
def slotV(c): return 14+c
def slotD(s): return 21+s
NSEQ = 35
XF = 16; ACC = {0: 128, 1: 160, 2: 192, 3: 128}; WF = 224
P2ACC = 160
FINE = opt("fine", 1)
ops = []
def p1op(pair, m, c, s, slot, xread):
    fine = (pair < 2 and c < FINE)
    return dict(ph=1, pair=pair, acc=ACC[pair]+16*m, first=(c == 0 and s == 0), breg=XF+16*c+4*s, slot=slot,
                off=m*8192+s*2048, tstep=512, half=pair & 1, xread=xread, last=(c == 6 and s == 3),
                need=2*slot + (1 if (s < 2 and fine) else 2))
for c in range(7):
    order = [(pair, s) for s in range(4) for pair in range(2)] if c < 6 else [(pair, s) for pair in range(2) for s in range(4)]
    for pair, s in order:
        for m in range(2):
            ops.append(p1op(pair, m, c, s, slotW(c), (slotX(c), s, XF+16*c+4*s) if (pair == 0 and m == 0) else None))
for j in range(7 + LAG):
    for s in range(4):
        if j < 7:
            for m in range(2): ops.append(p1op(2, m, j, s, slotV(j), None))
        if j >= LAG:
            for m in range(2): ops.append(p1op(3, m, j-LAG, s, slotV(j-LAG), None))
NP1 = len(ops)
HBUF = [list(range(16, 72, 4)), list(range(72, 128, 4)), list(range(128, 160, 4)) + list(range(192, 216, 4))]
def hreg(q, idx): return HBUF[q % 3][idx]
for q in range(4):
    for i in range(7):
        p = q*7 + i
        for s in range(2):
            for t in range(2):
                ops.append(dict(ph=2, acc=P2ACC+16*t, first=(p == 0 and s == 0), breg=hreg(q, 2*i+s), slot=slotD(p//2),
                                off=(p % 2)*4096+s*2048, tstep=1024, half=t, xread=None, h=(q, 2*i+s), need=2*slotD(p//2)+2))
NOPS = len(ops)
lastuse = {}
for i, o in enumerate(ops):
    lastuse[o["slot"]] = i
    if o["xread"]: lastuse[o["xread"][0]] = max(lastuse.get(o["xread"][0], -1), i)
ticks = []
cur = 0
for j, o in enumerate(ops):
    extra = (o["ph"] == 1 and j >= NP1 - 8*LAG and (NP1 - j) % 8 == 0)
    if o["need"] > cur or extra:
        cur = max(cur, o["need"]); ticks.append((j, cur))
tick_at = {j: k for k, (j, _) in enumerate(ticks)}
def done_at_tick(k):
    j = ticks[k][0]
    d = j - LA
    if W2 and d % 2 == 0: d += 1
    if j >= NP1 and j - LA < NP1: return NP1 - 1
    return d

a = Asm()
a(f"""
s_getpc_b64 s[60:61]
s_cmp_ge_u32 s2, {256 if PREF else NWG}
s_cbranch_scc1 L_end
s_load_dwordx8 s[4:11], s[0:1], 0
s_load_dwordx4 s[12:15], s[0:1], 32
s_load_dwordx2 s[76:77], s[0:1], 48
""")
if STAMPS: a(f"{TS} s[80:81]")
a(f"""
v_lshrrev_b32 v1, 6, v0
v_and_b32 v2, 63, v0             ; lane
v_readfirstlane_b32 s40, v1      ; wave
s_and_b32 s41, s2, 7             ; xcd
s_lshr_b32 s42, s2, 3            ; j 0..27
s_cmp_ge_u32 s42, 28
s_cbranch_scc1 L_pref
s_and_b32 s43, s41, 3            ; mgrp
s_lshr_b32 s44, s41, 2           ; fgrp
s_and_b32 s45, s42, 3
s_lshr_b32 s46, s42, 2
s_lshl_b32 s47, s43, 2
s_add_u32 s47, s47, s45          ; Mtile 0..15
s_mul_i32 s48, s44, 7
s_add_u32 s48, s48, s46          ; Ftile 0..13
""")
if ROT == 1:
    a(f"""
    s_lshl_b32 s49, s45, 1
    s_add_u32 s49, s49, s46
    s_cmp_ge_u32 s49, 7
    s_cselect_b32 s50, 7, 0
    s_sub_u32 s49, s49, s50          ; rot
    """)
elif ROT == 2:
    a(f"""
    s_add_u32 s49, s45, s46
    s_and_b32 s49, s49, 1
    s_mul_i32 s49, s49, 3
    """)
elif ROT == 3:
    a(f"""
    s_add_u32 s49, s45, s46
    s_mul_hi_u32 s50, s49, 0x55555556
    s_mul_i32 s50, s50, 3
    s_sub_u32 s49, s49, s50
    s_lshl_b32 s49, s49, 1
    """)
else:
    a("s_mov_b32 s49, 0")
a(f"""
s_cmp_gt_u32 s40, 1
s_cbranch_scc1 L_compute
""")
st = Stamper(a)
vm = Cnt(a, "vmcnt", 63)
a(f"""
v_lshrrev_b32 v3, 3, v2          ; l/8
v_and_b32 v4, 7, v2              ; l%8
v_lshrrev_b32 v5, 4, v2          ; l>>4
v_xor_b32 v6, v4, v5
v_mul_u32_u24 v8, 896, v3
v_lshl_add_u32 v16, v6, 4, v8    ; X voff j=0
v_xor_b32 v7, 4, v6
v_lshl_add_u32 v17, v7, 4, v8
v_add_u32 v17, {7168-1024}, v17
v_add_u32 v18, {2*(7168-1024)}, v16
v_add_u32 v19, {2*(7168-1024)}, v17
v_and_b32 v6, 1, v5
v_lshlrev_b32 v6, 2, v6
v_xor_b32 v6, v4, v6
v_mul_u32_u24 v9, 3584, v3
v_lshl_add_u32 v20, v6, 4, v9    ; W voff
v_add_u32 v21, {1*(8*3584-1024)}, v20
v_add_u32 v22, {2*(8*3584-1024)}, v20
v_add_u32 v23, {3*(8*3584-1024)}, v20
v_lshl_add_u32 v24, v6, 4, v8    ; D voff
v_add_u32 v25, {1*(7168-1024)}, v24
v_add_u32 v26, {2*(7168-1024)}, v24
v_add_u32 v27, {3*(7168-1024)}, v24
s_lshl_b32 s51, s47, 1
s_add_u32 s51, s51, s40
s_mul_i32 s51, s51, {64*896}     ; X base
s_lshl_b32 s52, s48, 8           ; W base
s_lshl_b32 s53, s46, 7
s_mul_i32 s50, s40, {128*896}
s_add_u32 s53, s53, s50          ; D base
s_mov_b32 s54, s49
s_lshl_b32 s56, s40, 13          ; 8192*lw
s_mov_b32 s18, {XB}
s_mov_b32 s19, 0x20000
s_mov_b32 s22, {WB}
s_mov_b32 s23, 0x20000
s_cmp_eq_u32 s40, 0
s_waitcnt lgkmcnt(0)
s_mov_b32 s16, s4
s_mov_b32 s17, s5
s_cselect_b32 s20, s6, s8
s_cselect_b32 s21, s7, s9
""")
ADV = ["s_add_u32 s54, s54, 1", "s_cmp_eq_u32 s54, 7\ns_cselect_b32 s54, 0, s54"]
def issue_half(g):
    n, hh = divmod(g, 2)
    base = (n % NSLOT)*SLOT + 4096*hh
    post = []
    if n < 14 and n % 2 == 0:
        vb, sr = 16, 16
        pre = "s_lshl_b32 s55, s54, 7\ns_add_u32 s55, s55, s51" if hh == 0 else f"s_add_u32 s55, s55, {32*896}"
    elif n < 21:
        vb, sr = 20, 20
        pre = f"s_mul_i32 s55, s54, {64*3584}\ns_add_u32 s55, s55, s52" if hh == 0 else f"s_add_u32 s55, s55, {32*3584}"
        if hh == 1: post = list(ADV)
        if g == 27: post.append("s_add_u32 s52, s52, 128")
    else:
        vb, sr = 24, 28
        pre = f"s_mul_i32 s55, s54, {256*896}\ns_add_u32 s55, s55, s53"
        post = list(ADV)
        if (g - 42) % 7 == 6: post.append(f"s_add_u32 s53, s53, {32*896}")
    a(f"s_add_u32 m0, s56, {base}" if base else "s_mov_b32 m0, s56")
    a(pre)
    for j in range(4):
        vm.emit(f"buffer_load_dwordx4 v{vb+j}, s[{sr}:{sr+3}], s55 offen offset:{1024*j} lds", g)
        if post: a(post.pop(0))
nxt = 0
credit = 0.0
NG = 2*NSEQ
for k, (j, need) in enumerate(ticks):
    def free(g):
        n = g // 2
        if n < NSLOT: return True
        if k == 0: return False
        return lastuse[n - NSLOT] <= done_at_tick(k-1)
    gap = (j - ticks[k-1][0]) if k else 0
    if j == NP1: cyc = gap*33 + 600
    elif j > NP1: cyc = 2*GCOST
    else: cyc = gap*33
    credit = min(credit, 0.99) + cyc / GCOST
    lim = need + (AHEAD0 if k == 0 else AHEAD)
    while nxt < NG and free(nxt) and (nxt < lim or credit >= 1.0):
        issue_half(nxt); nxt += 1; credit -= 1.0
        if nxt == 4:
            srd(a, 28, 10, WB); srd(a, 32, 76, WSB)
            st.stamp()
    credit = max(credit, 0.0)
    if VERB: print("tick", k, "op", j, "need", need, "issued", nxt)
    assert nxt >= need, (k, nxt, need)
    vm.wait(lambda t: t < need)
    a("s_barrier")
    if j in (0, 96, 112, 184, NP1, NP1 + 56): st.stamp()
st.stamp()
st.flush()
a("s_endpgm")

a.label("L_pref")
a(f"""
s_sub_u32 s42, s42, 28           ; 0..3
v_lshlrev_b32 v9, 4, v2
s_mul_i32 s42, s42, 6
s_add_u32 s42, s42, s40          ; pw 0..23
s_mov_b32 s48, 0                 ; q offset
s_waitcnt lgkmcnt(0)
""")
srd(a, 28, 10, WB)
if opt("pfdelay", 0): a(f"s_sleep {opt('pfdelay', 0)}")
a.label("L_pf2")
a(f"s_mov_b32 s49, s42")
a.label("L_pf3")
a(f"""
s_mul_hi_u32 s45, s49, {(2**32 + 27)//28}
s_mul_i32 s46, s45, {128*896 - 28*1024}
s_lshl_b32 s47, s49, 10
s_add_u32 s47, s47, s46
s_add_u32 s47, s47, s48
s_waitcnt vmcnt(30)
buffer_load_dwordx4 v[20:23], v9, s[28:31], s47 offen
s_add_u32 s49, s49, 24
s_cmp_lt_u32 s49, 392
s_cbranch_scc1 L_pf3
s_add_u32 s48, s48, {32*896}
s_cmp_lt_u32 s48, {4*32*896}
s_cbranch_scc1 L_pf2
s_endpgm
""")

a.label("L_compute")
st = Stamper(a, True)
vm = Cnt(a, "vmcnt", 63); lg = Cnt(a, "lgkmcnt", 15)
a(f"""
s_mov_b32 s62, @CODE_SIZE@
s_mov_b32 s63, 0x20000
v_subrev_u32 v3, 128, v0
v_lshlrev_b32 v3, 7, v3
""")
vm.emit("buffer_load_dword v15, v3, s[60:63], 0 offen", ("pf", 0))
a(f"""
s_setprio {CPRIO}
s_memrealtime s[68:69]
s_lshl_b32 s55, s43, 3
s_lshl_b32 s56, s44, 2
s_add_u32 s55, s55, s56
s_add_u32 s55, s55, s45          ; m64 (consumer)
s_sub_u32 s50, s40, 2            ; cw
v_and_b32 v3, 31, v2             ; l%32
v_lshrrev_b32 v4, 5, v2          ; hi
s_lshl_b32 s51, s50, 5
v_add_u32 v5, s51, v3            ; row = 32cw + l%32
v_bfe_u32 v6, v5, 1, 3           ; sw
v_xor_b32 v6, v6, v4
v_lshlrev_b32 v6, 4, v6
v_lshl_add_u32 v1, v5, 7, v6
v_bfe_u32 v5, v2, 2, 2           ; r
v_lshrrev_b32 v7, 1, v5          ; r>>1
v_lshlrev_b32 v7, 6, v7
v_bfe_u32 v8, v2, 4, 1           ; fsub
v_lshl_add_u32 v7, v8, 5, v7
v_and_b32 v8, 3, v2
v_lshl_add_u32 v7, v8, 3, v7
v_lshl_add_u32 v7, v5, 7, v7
v_lshl_add_u32 v10, v4, 9, v7    ; phase-2 lane part
v_lshl_add_u32 v3, v4, 10, v7    ; phase-1 base (8hi rows)
v_add_u32 v4, 0x10000, v3
v_add_u32 v5, 0x20000, v3
v_xor_b32 v6, 64, v3
v_xor_b32 v7, 64, v4
v_xor_b32 v8, 64, v5
v_lshlrev_b32 v9, 4, v2          ; lane*16
v_add_u32 v11, 4096, v9
s_lshl_b32 s52, s47, 2
s_add_u32 s52, s52, s50          ; mt32p
s_mul_i32 s53, s52, 14
s_add_u32 s53, s53, s48
s_lshl_b32 s54, s53, 13          ; h store base
; own flag: FLAG_OFF + (mt32p*2 + (Ftile&1))*256 + (Ftile>>1)*8 (+64*stage)
s_lshl_b32 s53, s52, 1
s_and_b32 s56, s48, 1
s_add_u32 s53, s53, s56
s_lshl_b32 s53, s53, 8
s_lshr_b32 s56, s48, 1
s_lshl_b32 s56, s56, 3
s_add_u32 s53, s53, s56
s_add_u32 s53, s53, {FLAG_OFF}
v_mov_b32 v14, s53
s_and_b32 s56, s50, 1            ; mi
s_lshr_b32 s57, s50, 1           ; kh
s_lshl_b32 s58, s55, 1
s_add_u32 s58, s58, s56          ; mt32c
s_mul_i32 s59, s58, 14
s_add_u32 s59, s59, s57
s_lshl_b32 s64, s59, 13
s_lshl_b32 s59, s58, 1
s_add_u32 s59, s59, s57
s_lshl_b32 s59, s59, 8
s_add_u32 s59, s59, {FLAG_OFF}
s_mov_b32 s65, 0xbfb8aa3b        ; -log2(e)
s_mov_b32 s66, s49
""")
for i in range(7):
    a(f"s_lshl_b32 s{20+i}, s66, 14\ns_add_u32 s{20+i}, s{20+i}, s64\ns_add_u32 s66, s66, 1\ns_cmp_eq_u32 s66, 7\ns_cselect_b32 s66, 0, s66")
a("s_waitcnt lgkmcnt(0)")
srd(a, 32, 76, WSB); srd(a, 28, 12, XB); srd(a, 36, 14, 256)
a(f"""
s_add_u32 s72, s76, s59
s_addc_u32 s73, s77, 0
s_add_u32 s67, s2, s50
s_cmp_lg_u32 s67, 0
s_cbranch_scc1 L_notag
s_or_b32 s69, s69, 0x80000000
v_mov_b32 v12, s68
v_mov_b32 v13, s69
v_mov_b32 v0, 0
s_mov_b64 exec, 1
buffer_store_dwordx2 v[12:13], v0, s[36:39], 0 offen sc0 sc1
s_mov_b64 exec, -1
""")
a.label("L_notag")
st.stamp()

lbl = [0]
stubs = []
def emit_reads(j):
    o = ops[j]
    if j in tick_at: a("s_barrier")
    if o["xread"]:
        sl, s, r = o["xread"]
        lg.emit(f"v_xor_b32 v2, {((sl % NSLOT)*SLOT) | (s << 5)}, v1\nds_read_b128 v[{r}:{r+3}], v2", j)
    buf = WF + 4*(j % 8)
    for t in range(2):
        off = (o["slot"] % NSLOT)*SLOT + o["off"] + t*o["tstep"]
        lg.emit(f"ds_read_b64_tr_b16 v[{buf+2*t}:{buf+2*t+1}], v{3 + 3*o['half'] + off//65536} offset:{off % 65536}", j)

def epilogue_ops(pair):
    G = ACC[pair]; U = G + 16
    l = []
    for q in range(4):
        rs = [4*q + i for i in range(4)]
        for i in rs: l.append(f"v_mul_f32 v{G+i}, s65, v{G+i}")
        for i in rs: l.append(f"v_exp_f32 v{G+i}, v{G+i}")
        for i in rs: l.append(f"v_add_f32 v{G+i}, 1.0, v{G+i}")
        for i in rs: l.append(f"v_rcp_f32 v{G+i}, v{G+i}")
        for i in rs: l.append(f"v_mul_f32 v{G+i}, v{G+i}, v{U+i}")
        l.append(f"v_cvt_pk_bf16_f32 v{U+2*q}, v{G+4*q}, v{G+4*q+1}")
        l.append(f"v_cvt_pk_bf16_f32 v{U+2*q+1}, v{G+4*q+2}, v{G+4*q+3}")
        if q % 2 == 1:
            j = q // 2
            l.append(("store", pair, j, f"buffer_store_dwordx4 v[{U+4*j}:{U+4*j+3}], v{9 if pair < 2 else 11}, s[32:35], s54 offen offset:{(pair & 1)*2048 + j*1024} sc1"))
    return [(pair, x) for x in l]
def emit_op(o):
    if isinstance(o, tuple): vm.emit(o[3], ("st", o[1]))
    else: a(o)
TAGLD = "s_load_dwordx2 s[74:75], s[36:37], 0"
def get_tag():
    n = lbl[0]; lbl[0] += 1
    a(f"s_waitcnt lgkmcnt(0)\ns_cmp_lg_u32 s75, 0\ns_cbranch_scc0 L_sl{n}"); lg.q = []
    a.label(f"L_ck{n}")
    a("v_mov_b32 v12, s74\nv_mov_b32 v13, s75")
    stubs.append(f"""L_sl{n}:
    s_mov_b32 s71, 0
    v_mov_b32 v0, 0
    L_tg{n}:
    buffer_load_dwordx2 v[12:13], v0, s[36:39], 0 offen sc1
    s_add_u32 s71, s71, 1
    s_waitcnt vmcnt(0)
    v_readfirstlane_b32 s74, v12
    v_readfirstlane_b32 s75, v13
    s_cmp_gt_u32 s71, {SPIN_G}
    s_cbranch_scc1 L_ck{n}
    s_cmp_eq_u32 s75, 0
    s_cbranch_scc0 L_ck{n}
    s_sleep 4
    s_branch L_tg{n}""")
def sig_ins(pair):
    return f"s_mov_b64 exec, 1\nbuffer_store_dwordx2 v[12:13], v14, s[32:35], 0 offen offset:{64*pair} sc0 sc1\ns_mov_b64 exec, -1"
def signal(pair):
    vm.wait(lambda t: t[0] == "st" and t[1] <= pair)
    vm.emit(sig_ins(pair), ("sig", pair))
def hins(q, idx):
    i, s_ = divmod(idx, 2)
    r = hreg(q, idx)
    return f"buffer_load_dwordx4 v[{r}:{r+3}], v{9 if q < 2 else 11}, s[32:35], s{20+i} offen offset:{(q & 1)*2048 + s_*1024} sc1"
def poll_ins(q): return f"s_load_dwordx16 s[4:19], s[72:73], {64*q} glc"
EVAL = "\n".join([f"s_xor_b64 s[{4+2*i}:{5+2*i}], s[{4+2*i}:{5+2*i}], s[74:75]" for i in range(7)] +
                 [f"s_or_b64 s[4:5], s[4:5], s[{4+2*i}:{5+2*i}]" for i in range(1, 7)])
if NOSYNC: EVAL += "\ns_cmp_lg_u32 0, 0"
def poll_eval(sreg):
    a("s_waitcnt lgkmcnt(0)"); lg.q = []
    a(EVAL)
    a(f"s_cselect_b32 {sreg}, 1, 0")
def spin_txt(q, n):
    return f"""
    s_mov_b32 s71, 0
    L_tg{n}:
    {poll_ins(q)}
    s_add_u32 s71, s71, 1
    s_waitcnt lgkmcnt(0)
    s_cmp_gt_u32 s71, {SPIN_G}
    s_cbranch_scc1 L_to{n}
    {EVAL}
    s_cbranch_scc1 L_tg{n}
    L_to{n}:
    """
def ensure(q, sreg):
    n = lbl[0]; lbl[0] += 1
    a(f"s_cmp_lg_u32 {sreg}, 0\ns_cbranch_scc1 L_sl{n}")
    a.label(f"L_ck{n}")
    stubs.append(f"L_sl{n}:\ns_waitcnt vmcnt(0)\n{sig_ins(2)}\n{sig_ins(3)}\n" + spin_txt(q, n) +
                 "\n".join(hins(q, i) for i in range(14)) + f"\ns_waitcnt vmcnt(0)\ns_branch L_ck{n}")
def block(q):
    n = lbl[0]; lbl[0] += 1
    a("s_waitcnt lgkmcnt(0)"); lg.q = []
    a(EVAL)
    a(f"s_cbranch_scc1 L_sl{n}")
    a.label(f"L_ck{n}")
    stubs.append(f"L_sl{n}:" + spin_txt(q, n) + f"s_branch L_ck{n}")

def mfma(i):
    o = ops[i]
    if W2:
        if (i % 2 == 0): lg.wait(lambda t: isinstance(t, int) and t <= i + 1)
    else:
        lg.wait(lambda t: isinstance(t, int) and t <= i)
    if o["ph"] == 2:
        vm.wait(lambda t: t[0] == "h" and (t[1], t[2]) <= o["h"])
    buf = WF + 4*(i % 8); acc = o["acc"]; b = o["breg"]
    csrc = "0" if o["first"] else f"v[{acc}:{acc+15}]"
    a(f"v_mfma_f32_32x32x16_bf16 v[{acc}:{acc+15}], v[{buf}:{buf+3}], v[{b}:{b+3}], {csrc}")
    if i in AT: st.stamp(True)

for j in range(LA): emit_reads(j)
pend = []
avail_at = {}
sig_at = {}
for i in range(NP1):
    mfma(i)
    o = ops[i]
    if i == 97: get_tag()
    if i + LA < NP1: emit_reads(i + LA)
    if o["last"] and (o["acc"] - ACC[o["pair"]]) == 16 and o["pair"] < 3:
        avail_at[i + 4] = o["pair"]
    if i in avail_at: pend += epilogue_ops(avail_at[i])
    if pend:
        for _ in range(EPG if pend[0][0] in (0, 2) else EPG2):
            if pend:
                pr, x = pend.pop(0); emit_op(x)
                if isinstance(x, tuple) and x[2] == 1 and pr < 2: sig_at[min(i + SIGD, NP1 - 1)] = pr
    if i == 60: a(TAGLD)
    if i + 1 < NP1 and ops[i+1]["pair"] == 3 and ops[i+1]["first"] and ops[i+1]["acc"] == ACC[3]:
        assert not any(pr == 0 for pr, x in pend), "pair-0 epilogue not finished"
        a("s_nop 1")
    if i in sig_at: signal(sig_at.pop(i))
    if i == NP1 - P0I: a(poll_ins(0))
    if i == 111: st.stamp()
assert not sig_at
st.stamp()
poll_eval("s68")
a(poll_ins(1))
a(f"""
s_lshl_b32 s67, s57, 6
s_lshl_b32 s71, s57, 13
v_xor_b32 v3, s67, v10
v_add_u32 v3, s71, v3
v_add_u32 v4, 0x10000, v3
v_add_u32 v5, 0x20000, v3
v_xor_b32 v6, 64, v3
v_xor_b32 v7, 64, v4
v_xor_b32 v8, 64, v5
s_cmp_lg_u32 s68, 0
""")
tail = [x for _, x in pend] + [x for _, x in epilogue_ops(3)]
step = max(1, len(tail) // max(NI, 1))
hi = 0
def cond_h(q, idx):
    n = lbl[0]; lbl[0] += 1
    a(f"s_cbranch_scc1 L_ch{n}")
    vm.emit(hins(q, idx), ("h", q, idx))
    a.label(f"L_ch{n}")
for k, x in enumerate(tail):
    if hi < NI and k % step == 0: cond_h(0, hi); hi += 1
    emit_op(x)
st.stamp()
n = lbl[0]; lbl[0] += 1
a(f"s_cbranch_scc1 L_ch{n}")
while hi < 14: vm.emit(hins(0, hi), ("h", 0, hi)); hi += 1
a.label(f"L_ch{n}")
ensure(0, "s68")
poll_eval("s70")
a("s_lshl_b32 s71, s70, 31\nv_or_b32 v0, s71, v9")
for idx in range(14): vm.emit(hins(1, idx).replace(", v9, ", ", v0, "), ("h", 1, idx))
for j in range(NP1, NP1 + LA): emit_reads(j)
st.stamp()
pendh = []
for i in range(NP1, NOPS):
    k = i - NP1
    if k == S2: signal(2)
    if k == S3: signal(3)
    mfma(i)
    if i + LA < NOPS: emit_reads(i + LA)
    if k == E1:
        ensure(1, "s70")
    if k == P2I: a(poll_ins(2))
    if k == P3I: a(poll_ins(3))
    for q, at in ((2, CHK2), (3, CHK3)):
        if k == at:
            assert not pendh
            block(q)
            pendh = [(hins(q, idx), ("h", q, idx)) for idx in range(14)]
    for _ in range(HPG):
        if pendh:
            it = pendh.pop(0); vm.emit(it[0], it[1])
    if k in (27, 55, 83): st.stamp()
st.stamp()
RED = ((slotD(13) + 2) % NSLOT) * SLOT
assert lastuse[slotD(13) + 2 - NSLOT] <= done_at_tick(len(ticks) - 1)
KEEP = P2ACC; SEND = P2ACC + 16
a(f"""
s_lshl_b32 s67, s50, 12
s_add_u32 s67, s67, {RED}
v_add_u32 v3, s67, v9
v_xor_b32 v4, 0x2000, v3
v_lshrrev_b32 v2, 4, v9
v_and_b32 v5, 31, v2
v_mul_u32_u24 v5, 896, v5
v_lshrrev_b32 v6, 5, v2
v_lshl_add_u32 v5, v6, 4, v5
s_mul_i32 s67, s58, {32*896}
s_lshl_b32 s71, s46, 7
s_add_u32 s67, s67, s71
s_lshl_b32 s71, s57, 6
s_add_u32 s67, s67, s71
""")
for g in range(4):
    a(f"ds_write_b128 v3, v[{SEND+4*g}:{SEND+4*g+3}] offset:{g*1024}")
a("s_waitcnt lgkmcnt(0)\ns_barrier")
for g in range(4):
    a(f"ds_read_b128 v[{72+4*g}:{75+4*g}], v4 offset:{g*1024}")
for g in range(4):
    a(f"s_waitcnt lgkmcnt({3-g})")
    for i in range(4): a(f"v_add_f32 v{72+4*g+i}, v{72+4*g+i}, v{KEEP+4*g+i}")
    a(f"v_cvt_pk_bf16_f32 v{88+2*g}, v{72+4*g}, v{73+4*g}\nv_cvt_pk_bf16_f32 v{89+2*g}, v{74+4*g}, v{75+4*g}")
    if g % 2 == 1:
        b = 88 + 2*(g-1)
        a(f"""
        s_nop 1
        v_permlane32_swap_b32 v{b}, v{b+2}
        v_permlane32_swap_b32 v{b+1}, v{b+3}
        buffer_store_dwordx4 v[{b}:{b+3}], v5, s[28:31], s67 offen offset:{(g//2)*32}
        """)
st.stamp()
st.flush()
a.label("L_end")
a("s_endpgm")
for x in stubs: a(x)
body = a.text()
src = HEADER + f"; @launch grid=({256 if PREF else NWG},1,1) block=(384,1,1) lds={LDS}\n" + TARGET
src += kernel_text(KN, body)
def code_size(txt):
    open("_sz.s", "w").write(txt)
    subprocess.run(["clang", "-x", "assembler", "-target", "amdgcn-amd-amdhsa", "-mcpu=gfx950", "-c", "_sz.s", "-o", "_sz.o"], check=True)
    o = subprocess.run(["llvm-objdump", "-h", "_sz.o"], capture_output=True, text=True).stdout
    return int(re.search(r"\.text\s+([0-9a-f]+)", o).group(1), 16)
sz = code_size(src.replace("@CODE_SIZE@", "0x4000"))
src = src.replace("@CODE_SIZE@", str(sz - 8))
assert code_size(src) == sz and sz <= 32768
print("code size", sz, "forced waits", Cnt.forced)
open(outf, "w").write(src)
```
